```python
import torch

def _softmax(x, axis=-1):
    return torch.softmax(x, dim=axis)
def _gelu(x):
    return torch.nn.functional.gelu(x, approximate="tanh")
def _silu(x):
    return torch.nn.functional.silu(x)
def _sigmoid(x):
    return torch.sigmoid(x)
def _layernorm(x, axis=-1, eps=1e-5):
    m = x.mean(dim=axis, keepdim=True)
    v = x.var(dim=axis, keepdim=True, unbiased=False)
    return (x - m) / torch.sqrt(v + eps)
def _scatter_add(tgt, idx, src, axis=0):
    return tgt.clone().index_add_(axis, idx, src)
def _segment_sum(src, seg, n):
    out = torch.zeros((n,) + src.shape[1:], dtype=src.dtype)
    return out.index_add_(0, seg, src)
def _pad(x, pw):
    flat = tuple(v for pair in reversed(pw) for v in pair)
    return torch.nn.functional.pad(x, flat)

kernel_name = 'gated_mix__sliding_block__swiglu_ffn__prompt'

def setup_inputs():

    _w = (lambda a: (lambda t: t.to(torch.bfloat16) if t.is_floating_point() else t)(torch.as_tensor(a)))
    def _A_setup():
        B, S, D = 1, 2048, 640
        return {
            "x": _w((lambda *s: torch.randn(*s, dtype=torch.bfloat16) * 0.05)(B, S, D)),
            "wqkv": _w((lambda *s: torch.randn(*s, dtype=torch.bfloat16) * 1.6)(D, 3 * D)),
            "wo": _w((lambda *s: torch.randn(*s, dtype=torch.bfloat16) * 0.05)(D, D)),
        }
    _A_in = _A_setup()

    def _B_setup():
        B, S, D, F = 1, 2048, 640, 1728
        return {
            "x": _w((lambda *s: torch.randn(*s, dtype=torch.bfloat16) * 0.05)(B, S, D)),
            "w_gate": _w((lambda *s: torch.randn(*s, dtype=torch.bfloat16) * 0.4)(D, F)),
            "w_up": _w((lambda *s: torch.randn(*s, dtype=torch.bfloat16) * 0.4)(D, F)),
            "w_down": _w((lambda *s: torch.randn(*s, dtype=torch.bfloat16) * 0.4)(F, D)),
        }
    _B_in = _B_setup()

    return {
        "A_x": _A_in["x"],
        "A_wqkv": _A_in["wqkv"],
        "A_wo": _A_in["wo"],
        "B_x": _B_in["x"],
        "B_w_gate": _B_in["w_gate"],
        "B_w_up": _B_in["w_up"],
        "B_w_down": _B_in["w_down"],
        "gate_w": _w((lambda *s: torch.randn(*s, dtype=torch.bfloat16) * 0.05)(640) * 16.0),
    }

def reference(A_x, A_wqkv, A_wo, B_x, B_w_gate, B_w_up, B_w_down, gate_w):
    def _A_ref(x, wqkv, wo):
        B, S, D = x.shape
        H = 32; Dh = D // H; W = 256
        qkv = (lambda x, *d: x.permute(*d))((x @ wqkv).reshape(B, S, 3, H, Dh), 2, 0, 3, 1, 4)
        q, k, v = qkv[0], qkv[1], qkv[2]
        scores = torch.einsum("bhqd,bhkd->bhqk", q, k) * (Dh ** -0.5)
        idx = torch.arange(S)
        mask = (idx[:, None] - idx[None, :] >= 0) & (idx[:, None] - idx[None, :] < W)
        scores = torch.where(mask[None, None], scores, -1e9)
        p = _softmax(scores, axis=-1)
        o = torch.einsum("bhqk,bhkd->bhqd", p, v)
        return (lambda x, *d: x.permute(*d))(o, 0, 2, 1, 3).reshape(B, S, D) @ wo

    def _B_ref(x, w_gate, w_up, w_down):
        g = _silu(x @ w_gate)
        u = x @ w_up
        return (g * u) @ w_down

    x = A_x
    g = _sigmoid((x * gate_w).sum(-1, keepdims=True))
    a = _A_ref(x, A_wqkv, A_wo)
    b = _B_ref(x, B_w_gate, B_w_up, B_w_down)
    return g * a + (1 - g) * b
```

```python
class Asm:
    def __init__(self):
        self.lines = []
    def __call__(self, s):
        for ln in s.strip('\n').split('\n'):
            ln = ln.strip()
            if ln:
                self.lines.append('    ' + ln)
    def label(self, name):
        self.lines.append(name + ':')
    def comment(self, s):
        self.lines.append('    ; ' + s)
    def text(self):
        return '\n'.join(self.lines) + '\n'

def vr(base, n=1):
    return f'v{base}' if n == 1 else f'v[{base}:{base+n-1}]'
def sr(base, n=1):
    return f's{base}' if n == 1 else f's[{base}:{base+n-1}]'

def kernel_desc(name, vgpr, sgpr=102, accum=None):
    if accum is None:
        accum = (vgpr + 3) // 4 * 4
    return f'''
.section .rodata,"a"
.p2align 6
.amdhsa_kernel {name}
  .amdhsa_next_free_vgpr {vgpr}
  .amdhsa_next_free_sgpr {sgpr}
  .amdhsa_accum_offset {accum}
  .amdhsa_group_segment_fixed_size 0
  .amdhsa_kernarg_size 88
  .amdhsa_user_sgpr_count 2
  .amdhsa_user_sgpr_kernarg_segment_ptr 1
  .amdhsa_system_sgpr_workgroup_id_x 1
.end_amdhsa_kernel
'''
```

```python
from asmlib import *

WS_QK = 0
WS_VT = 5242880
WS_H = 8 << 20
WS_O = 16 << 20
WS_GATE = 20 << 20
WS_SIZE = 24 << 20

NSTAGE = 20
NBUF = 4
STAGE_BYTES = 32768

def gen_k1(name='k1_kernel'):
    a = Asm()
    a.lines.append('.text')
    a.lines.append(f'.globl {name}')
    a.lines.append('.p2align 8')
    a.lines.append(f'.type {name},@function')
    a.label(name)
    a(f'''
    s_cmp_ge_u32 s2, 224
    s_cbranch_scc1 {name}_gate
    s_load_dwordx4 s[4:7], s[0:1], 0
    s_load_dwordx4 s[8:11], s[0:1], 32
    s_load_dwordx2 s[12:13], s[0:1], 80
    v_and_b32 v1, 63, v0
    v_lshrrev_b32 v20, 6, v0
    s_and_b32 s28, s2, 15
    s_lshr_b32 s29, s2, 4
    v_readfirstlane_b32 s30, v20
    s_nop 3
    s_lshr_b32 s31, s30, 1
    s_and_b32 s32, s30, 1
    s_waitcnt lgkmcnt(0)
    ; SRD X
    s_mov_b32 s16, s4
    s_and_b32 s17, s5, 0xffff
    s_mov_b32 s18, 2621440
    s_mov_b32 s19, 0x00020000
    s_mov_b32 s24, s12
    s_and_b32 s25, s13, 0xffff
    s_mov_b32 s26, {WS_SIZE}
    s_mov_b32 s27, 0x00020000
    s_mov_b32 s23, 0x00020000
    s_cmp_ge_u32 s29, 5
    s_cbranch_scc1 {name}_ffn_setup
    s_mov_b32 s20, s6
    s_and_b32 s21, s7, 0xffff
    s_mov_b32 s22, 2457600
    s_mov_b32 s33, 3840
    s_mul_i32 s34, s29, 768
    s_cmp_ge_u32 s30, 4
    s_cselect_b32 s41, 384, 0
    s_add_u32 s34, s34, s41
    s_branch {name}_setup_done
    {name}_ffn_setup:
    s_cmp_ge_u32 s30, 4
    s_cselect_b32 s20, s10, s8
    s_cselect_b32 s21, s11, s9
    s_and_b32 s21, s21, 0xffff
    s_mov_b32 s22, 2211840
    s_mov_b32 s33, 3456
    s_sub_u32 s34, s29, 5
    s_mul_i32 s34, s34, 384
    {name}_setup_done:
    ''')
    a('''
    v_lshrrev_b32 v20, 4, v1
    v_lshlrev_b32 v20, 1, v20
    v_mov_b32 v21, 0x78
    v_lshrrev_b32 v21, v20, v21
    v_and_b32 v21, 3, v21
    v_and_b32 v22, 3, v1
    v_xor_b32 v21, v21, v22
    v_lshlrev_b32 v21, 4, v21
    s_lshl_b32 s41, s28, 7
    s_lshl_b32 s42, s30, 4
    s_add_u32 s41, s41, s42
    v_lshrrev_b32 v22, 2, v1
    v_add_u32 v22, s41, v22
    s_movk_i32 s42, 1280
    v_mul_lo_u32 v22, v22, s42
    v_add_u32 v2, v22, v21
    v_lshrrev_b32 v20, 3, v1
    v_mul_lo_u32 v20, v20, s33
    v_lshrrev_b32 v21, 4, v1
    v_and_b32 v21, 1, v21
    v_lshlrev_b32 v21, 1, v21
    v_and_b32 v22, 7, v1
    v_xor_b32 v21, v21, v22
    v_lshlrev_b32 v21, 4, v21
    s_and_b32 s42, s30, 3
    s_mul_i32 s42, s42, 3
    s_lshr_b32 s45, s30, 2
    s_mul_i32 s45, s45, 3
    ''')
    for i in range(3):
        a(f'''
        s_add_u32 s43, s42, {i}
        s_lshr_b32 s44, s43, 2
        s_and_b32 s43, s43, 3
        ; s44 = group, s43 = q
        s_and_b32 s46, s43, 1
        s_lshl_b32 s46, s46, 6
        v_xor_b32 v22, s46, v21
        v_add_u32 v22, v22, v20
        s_lshl_b32 s46, s43, 3
        s_mul_i32 s46, s46, s33
        s_lshl_b32 s47, s44, 7
        s_add_u32 s46, s46, s47
        s_add_u32 s46, s46, s34
        v_add_u32 v{3+i}, s46, v22
        s_add_u32 s44, s44, s45
        s_lshl_b32 s44, s44, 12
        s_lshl_b32 s43, s43, 10
        s_add_u32 s44, s44, s43
        s_add_u32 s{38+i}, s44, 8192
        ''')
    a('''
    s_lshl_b32 s37, s30, 10
    v_and_b32 v20, 15, v1
    v_lshrrev_b32 v21, 2, v20
    v_lshlrev_b32 v21, 1, v21
    v_mov_b32 v22, 0x78
    v_lshrrev_b32 v22, v21, v22
    v_and_b32 v22, 3, v22
    v_lshrrev_b32 v23, 4, v1
    v_xor_b32 v22, v22, v23
    v_lshlrev_b32 v22, 4, v22
    s_lshl_b32 s41, s32, 6
    v_add_u32 v20, s41, v20
    v_lshlrev_b32 v20, 6, v20
    v_add_u32 v6, v20, v22
    v_add_u32 v7, 0x10000, v6
    v_lshrrev_b32 v20, 4, v1
    v_bfe_u32 v21, v1, 2, 2
    v_lshlrev_b32 v22, 3, v20
    v_add_u32 v22, v22, v21
    v_lshlrev_b32 v22, 7, v22
    v_and_b32 v23, 1, v1
    v_lshlrev_b32 v23, 3, v23
    v_add_u32 v22, v22, v23
    v_add_u32 v22, 8192, v22
    v_lshrrev_b32 v23, 1, v21
    v_lshlrev_b32 v23, 1, v23
    v_and_b32 v24, 1, v20
    v_lshlrev_b32 v24, 2, v24
    v_or_b32 v23, v23, v24
    v_bfe_u32 v24, v1, 1, 1
    v_xor_b32 v23, v23, v24
    s_mul_i32 s41, s31, 3
    ''')
    for j in range(6):
        add = (j % 3) + (12 if j >= 3 else 0)
        a(f'''
        s_add_u32 s42, s41, {add}
        s_lshr_b32 s43, s42, 2
        s_and_b32 s42, s42, 3
        s_lshl_b32 s42, s42, 1
        s_lshl_b32 s43, s43, 12
        v_xor_b32 v24, s42, v23
        v_lshlrev_b32 v24, 4, v24
        v_add_u32 v24, v24, v22
        v_add_u32 v{8+j}, s43, v24
        v_add_u32 v{14+j}, 0x10000, v{8+j}
        ''')
    a('''
    s_mov_b32 s35, 0
    s_mov_b32 s36, 0
    s_lshl_b32 s47, s33, 5
    ''')
    def dma(stage):
        b = stage % NBUF
        off = b * STAGE_BYTES
        a(f'''
        s_add_u32 m0, s37, {off}
        s_nop 0
        buffer_load_dwordx4 v2, s[16:19], s35 offen lds
        s_add_u32 m0, s38, {off}
        s_add_u32 s35, s35, 64
        buffer_load_dwordx4 v3, s[20:23], s36 offen lds
        s_add_u32 m0, s39, {off}
        s_nop 0
        buffer_load_dwordx4 v4, s[20:23], s36 offen lds
        s_add_u32 m0, s40, {off}
        s_nop 0
        buffer_load_dwordx4 v5, s[20:23], s36 offen lds
        s_add_u32 s36, s36, s47
        ''')
    XF = [128, 168]
    WF = [144, 184]
    def reads(stage):
        b = stage % NBUF
        st = stage & 1
        hi = b >= 2
        off = (b & 1) * STAGE_BYTES
        out = []
        seq = []
        for M in range(4):
            seq.append(f'ds_read_b128 v[{XF[st]+4*M}:{XF[st]+4*M+3}], v{7 if hi else 6} offset:{off + M*1024}')
        wl = []
        for j in range(6):
            for i in range(2):
                wl.append(f'ds_read_b64_tr_b16 v[{WF[st]+4*j+2*i}:{WF[st]+4*j+2*i+1}], v{(14 if hi else 8)+j} offset:{off + i*512}')
        out = wl[0:2] + seq + wl[2:]
        return out
    for s in range(4):
        dma(s)
    a('''
    s_waitcnt vmcnt(12)
    s_barrier
    ''')
    for r in reads(0):
        a(r)
    for s in range(NSTAGE):
        st = s & 1
        rem = NSTAGE - 1 - s
        vm = 4 * max(0, min(3, rem) - 1)
        a(f'''
        s_waitcnt vmcnt({vm}) lgkmcnt(0)
        s_barrier
        ''')
        if s + 4 < NSTAGE:
            dma(s + 4)
        rd = reads(s + 1) if s + 1 < NSTAGE else []
        k = 0
        idx = 0
        for j in range(6):
            for M in range(4):
                d = 32 + (j * 4 + M) * 4
                c = '0' if s == 0 else f'v[{d}:{d+3}]'
                a(f'v_mfma_f32_16x16x32_bf16 v[{d}:{d+3}], v[{WF[st]+4*j}:{WF[st]+4*j+3}], v[{XF[st]+4*M}:{XF[st]+4*M+3}], {c}')
                idx += 1
                while k < len(rd) and k < (idx * 2 + 2) // 3:
                    a(rd[k]); k += 1
        while k < len(rd):
            a(rd[k]); k += 1
    a('''
    s_nop 7
    s_nop 7
    ; v20 = m base row (rb*128 + 64wm + (l&15)), v21 = 4*(l>>4)
    v_and_b32 v20, 15, v1
    s_lshl_b32 s41, s28, 7
    s_lshl_b32 s42, s32, 6
    s_add_u32 s41, s41, s42
    v_add_u32 v20, s41, v20
    v_lshrrev_b32 v21, 4, v1
    v_lshlrev_b32 v21, 2, v21
    s_mul_i32 s41, s31, 48
    s_cmp_ge_u32 s29, 5
    s_cbranch_scc1 ''' + name + '''_epi_ffn
    ''')
    a(f'''
    s_mul_i32 s42, s29, 384
    s_add_u32 s41, s41, s42
    s_movk_i32 s43, 2560
    v_mul_lo_u32 v22, v20, s43
    v_lshlrev_b32 v23, 1, v21
    v_add_u32 v22, v22, v23
    v_lshlrev_b32 v23, 12, v21
    v_lshlrev_b32 v24, 1, v20
    v_add_u32 v23, v23, v24
    v_add_u32 v23, {WS_VT}, v23
    ; v23 = VT + 4*(l>>4)*4096 + m*2
    ''')
    for j in range(6):
        add = (192 if j >= 3 else 0) + 16 * (j % 3)
        a(f'''
        s_add_u32 s42, s41, {add}
        s_cmp_ge_u32 s42, 1280
        s_cbranch_scc1 {name}_v_{j}
        s_lshl_b32 s43, s42, 1
        ''')
        for M in range(4):
            d = 32 + (j * 4 + M) * 4
            a(f'''
            v_cvt_pk_bf16_f32 v128, v{d}, v{d+1}
            v_cvt_pk_bf16_f32 v129, v{d+2}, v{d+3}
            v_add_u32 v130, {M*16*2560}, v22
            buffer_store_dwordx2 v[128:129], v130, s[24:27], s43 offen
            s_nop 1
            ''')
        a(f'''
        s_branch {name}_n_{j}
        {name}_v_{j}:
        s_sub_u32 s43, s42, 1280
        s_lshl_b32 s43, s43, 12
        ''')
        for M in range(4):
            d = 32 + (j * 4 + M) * 4
            a(f'''
            v_cvt_pk_bf16_f32 v128, v{d}, v{d+1}
            v_cvt_pk_bf16_f32 v129, v{d+2}, v{d+3}
            buffer_store_short v128, v23, s[24:27], s43 offen offset:{M*32}
            s_add_u32 s44, s43, 4096
            buffer_store_short_d16_hi v128, v23, s[24:27], s44 offen offset:{M*32}
            s_add_u32 s44, s43, 8192
            buffer_store_short v129, v23, s[24:27], s44 offen offset:{M*32}
            s_add_u32 s44, s43, 12288
            buffer_store_short_d16_hi v129, v23, s[24:27], s44 offen offset:{M*32}
            s_nop 1
            ''')
        a(f'{name}_n_{j}:')
    a(f'''
    s_branch {name}_end
    {name}_epi_ffn:
    s_sub_u32 s42, s29, 5
    s_mul_i32 s42, s42, 192
    s_add_u32 s41, s41, s42
    s_lshl_b32 s41, s41, 1
    s_add_u32 s41, s41, {WS_H}
    s_movk_i32 s43, 3456
    v_mul_lo_u32 v22, v20, s43
    v_lshlrev_b32 v23, 1, v21
    v_add_u32 v22, v22, v23
    s_mov_b32 s44, 0xbfb8aa3b
    s_mov_b32 s45, 0xffff0000
    ''')
    for M in range(4):
        a(f'v_add_u32 v24, {M*16*3456}, v22')
        for i in range(3):
            dg = 32 + (i * 4 + M) * 4
            du = 32 + ((i + 3) * 4 + M) * 4
            for p in range(2):
                T = 131 + p * 8
                a(f'''
                v_cvt_pk_bf16_f32 v{T}, v{dg+2*p}, v{dg+2*p+1}
                v_cvt_pk_bf16_f32 v{T+1}, v{du+2*p}, v{du+2*p+1}
                v_lshlrev_b32 v{T+2}, 16, v{T}
                v_and_b32 v{T+3}, s45, v{T}
                v_mul_f32 v{T+4}, s44, v{T+2}
                v_mul_f32 v{T+5}, s44, v{T+3}
                v_exp_f32 v{T+4}, v{T+4}
                v_exp_f32 v{T+5}, v{T+5}
                s_nop 0
                v_add_f32 v{T+4}, 1.0, v{T+4}
                v_add_f32 v{T+5}, 1.0, v{T+5}
                v_rcp_f32 v{T+4}, v{T+4}
                v_rcp_f32 v{T+5}, v{T+5}
                s_nop 0
                v_mul_f32 v{T+2}, v{T+2}, v{T+4}
                v_mul_f32 v{T+3}, v{T+3}, v{T+5}
                v_cvt_pk_bf16_f32 v{T}, v{T+2}, v{T+3}
                v_lshlrev_b32 v{T+2}, 16, v{T}
                v_and_b32 v{T+3}, s45, v{T}
                v_lshlrev_b32 v{T+4}, 16, v{T+1}
                v_and_b32 v{T+5}, s45, v{T+1}
                v_mul_f32 v{T+2}, v{T+2}, v{T+4}
                v_mul_f32 v{T+3}, v{T+3}, v{T+5}
                v_cvt_pk_bf16_f32 v{128+p}, v{T+2}, v{T+3}
                ''')
            a(f'''
            buffer_store_dwordx2 v[128:129], v24, s[24:27], s41 offen offset:{32*i}
            s_nop 1
            ''')
    a(f'{name}_end:')
    a('s_endpgm')
    a(f'''
    {name}_gate:
    s_cmp_ge_u32 s2, 256
    s_cbranch_scc1 {name}_end
    s_load_dwordx2 s[4:5], s[0:1], 0
    s_load_dwordx2 s[6:7], s[0:1], 56
    s_load_dwordx2 s[12:13], s[0:1], 80
    v_lshrrev_b32 v2, 3, v0
    v_and_b32 v3, 7, v0
    s_sub_u32 s28, s2, 224
    s_lshl_b32 s28, s28, 6
    v_add_u32 v2, s28, v2
    v_mul_u32_u24 v4, 1280, v2
    v_mul_u32_u24 v5, 160, v3
    v_add_u32 v4, v4, v5
    s_waitcnt lgkmcnt(0)
    s_mov_b32 s16, s4
    s_and_b32 s17, s5, 0xffff
    s_mov_b32 s18, 2621440
    s_mov_b32 s19, 0x00020000
    s_mov_b32 s20, s6
    s_and_b32 s21, s7, 0xffff
    s_mov_b32 s22, 1280
    s_mov_b32 s23, 0x00020000
    s_mov_b32 s24, s12
    s_and_b32 s25, s13, 0xffff
    s_mov_b32 s26, {WS_SIZE}
    s_mov_b32 s27, 0x00020000
    s_mov_b32 s45, 0xffff0000
    ''')
    for c in range(10):
        a(f'buffer_load_dwordx4 v[{32+4*c}:{35+4*c}], v4, s[16:19], 0 offen offset:{16*c}')
        a(f'buffer_load_dwordx4 v[{80+4*c}:{83+4*c}], v5, s[20:23], 0 offen offset:{16*c}')
    a('v_mov_b32 v6, 0\nv_mov_b32 v7, 0\ns_waitcnt vmcnt(0)')
    for c in range(40):
        a(f'''
        v_lshlrev_b32 v8, 16, v{32+c}
        v_and_b32 v9, s45, v{32+c}
        v_lshlrev_b32 v10, 16, v{80+c}
        v_and_b32 v11, s45, v{80+c}
        v_mul_f32 v8, v8, v10
        v_mul_f32 v9, v9, v11
        v_cvt_pk_bf16_f32 v8, v8, v9
        v_lshlrev_b32 v9, 16, v8
        v_and_b32 v8, s45, v8
        v_add_f32 v6, v6, v9
        v_add_f32 v7, v7, v8
        ''')
    a(f'''
    v_add_f32 v6, v6, v7
    ds_swizzle_b32 v7, v6 offset:0x041F
    s_waitcnt lgkmcnt(0)
    v_add_f32 v6, v6, v7
    ds_swizzle_b32 v7, v6 offset:0x081F
    s_waitcnt lgkmcnt(0)
    v_add_f32 v6, v6, v7
    ds_swizzle_b32 v7, v6 offset:0x101F
    s_waitcnt lgkmcnt(0)
    v_add_f32 v6, v6, v7
    v_cvt_pk_bf16_f32 v6, v6, v6
    v_lshlrev_b32 v6, 16, v6
    v_mul_f32 v6, 0xbfb8aa3b, v6
    v_exp_f32 v6, v6
    s_nop 0
    v_add_f32 v6, 1.0, v6
    v_rcp_f32 v6, v6
    s_nop 0
    v_cvt_pk_bf16_f32 v6, v6, v6
    v_lshlrev_b32 v6, 16, v6
    v_lshlrev_b32 v2, 2, v2
    v_add_u32 v2, {WS_GATE}, v2
    v_cmp_eq_u32 vcc, 0, v3
    s_and_saveexec_b64 s[44:45], vcc
    buffer_store_dword v6, v2, s[24:27], 0 offen
    s_endpgm
    ''')
    return a.text() + kernel_desc(name, 208, 64)

if __name__ == '__main__':
    print(gen_k1())
```

```python
from asmlib import *
from k1 import WS_QK, WS_VT, WS_H, WS_O, WS_GATE, WS_SIZE

def gen_k2(name='k2_kernel'):
    a = Asm()
    a.lines.append('.text')
    a.lines.append(f'.globl {name}')
    a.lines.append('.p2align 8')
    a.lines.append(f'.type {name},@function')
    a.label(name)
    S = 64
    QF = 8
    KF = [16, 24, 32]
    VF = [208, 216, 224]
    OA = 40
    a(f'''
    s_cmp_ge_u32 s2, 512
    s_cbranch_scc1 {name}_end
    s_load_dwordx2 s[12:13], s[0:1], 80
    v_and_b32 v1, 63, v0
    v_lshrrev_b32 v2, 6, v0
    s_and_b32 s28, s2, 31
    s_lshr_b32 s29, s2, 5
    v_readfirstlane_b32 s30, v2
    s_nop 3
    s_lshl_b32 s31, s29, 7
    s_lshl_b32 s32, s30, 5
    s_add_u32 s31, s31, s32
    ; s31 = q0 ; s28 = head
    s_waitcnt lgkmcnt(0)
    s_mov_b32 s24, s12
    s_and_b32 s25, s13, 0xffff
    s_mov_b32 s26, {WS_SIZE}
    s_mov_b32 s27, 0x00020000
    v_and_b32 v2, 31, v1
    v_lshrrev_b32 v3, 5, v1
    s_movk_i32 s33, 2560
    v_mul_lo_u32 v4, v2, s33
    v_lshlrev_b32 v5, 4, v3
    v_add_u32 v4, v4, v5
    s_mul_i32 s34, s28, 40
    ; Q load
    s_mul_i32 s35, s31, 2560
    s_add_u32 s35, s35, s34
    buffer_load_dwordx4 v[{QF}:{QF+3}], v4, s[24:27], s35 offen
    buffer_load_dwordx4 v[{QF+4}:{QF+7}], v4, s[24:27], s35 offen offset:32
    s_sub_u32 s36, s31, 256
    s_mul_i32 s37, s36, 2560
    s_add_u32 s37, s37, s34
    s_add_u32 s37, s37, 1280
    s_mul_i32 s38, s28, 20
    v_add_u32 v5, s38, v2
    v_lshlrev_b32 v5, 12, v5
    v_lshlrev_b32 v6, 3, v3
    v_add_u32 v5, v5, v6
    v_add_u32 v5, {WS_VT}, v5
    s_lshl_b32 s39, s36, 1
    ''')
    def kload(t):
        b = KF[t % 3]
        a(f'''
        buffer_load_dwordx4 v[{b}:{b+3}], v4, s[24:27], s37 offen
        buffer_load_dwordx4 v[{b+4}:{b+7}], v4, s[24:27], s37 offen offset:32
        s_add_u32 s37, s37, {32*2560}
        ''')
    def vload(t):
        b = VF[t % 3]
        a(f'''
        buffer_load_dwordx2 v[{b}:{b+1}], v5, s[24:27], s39 offen
        buffer_load_dwordx2 v[{b+2}:{b+3}], v5, s[24:27], s39 offen offset:16
        buffer_load_dwordx2 v[{b+4}:{b+5}], v5, s[24:27], s39 offen offset:32
        buffer_load_dwordx2 v[{b+6}:{b+7}], v5, s[24:27], s39 offen offset:48
        s_add_u32 s39, s39, 64
        ''')
    kload(0); kload(1); kload(2)
    a(f'''
    s_waitcnt vmcnt(6)
    v_mov_b32 v{QF+6}, 0
    v_mov_b32 v{QF+7}, 0
    v_cmp_le_u32 vcc, 32, v1
    s_nop 1
    v_cndmask_b32 v{QF+4}, v{QF+4}, 0, vcc
    v_cndmask_b32 v{QF+5}, v{QF+5}, 0, vcc
    s_mov_b32 s40, 0x3e64f92e
    s_mov_b32 s41, 0xffff0000
    s_mov_b32 s42, 0xf149f2ca
    ''')
    for t in range(9):
        b = KF[t % 3]
        d = S + 16 * t
        nout = min(2, 8 - t) * 2
        a(f'''
        s_waitcnt vmcnt({nout})
        v_mfma_f32_32x32x16_bf16 v[{d}:{d+15}], v[{b}:{b+3}], v[{QF}:{QF+3}], 0
        v_mfma_f32_32x32x16_bf16 v[{d}:{d+15}], v[{b+4}:{b+7}], v[{QF+4}:{QF+7}], v[{d}:{d+15}]
        ''')
        if t + 3 < 9:
            kload(t + 3)
    for t in range(3):
        vload(t)
    a('s_nop 7\ns_nop 7')
    T = 56
    for t in range(9):
        d = S + 16 * t
        for r in range(0, 16, 2):
            a(f'''
            v_cvt_pk_bf16_f32 v{T}, v{d+r}, v{d+r+1}
            v_lshlrev_b32 v{d+r}, 16, v{T}
            v_and_b32 v{d+r+1}, s41, v{T}
            v_mul_f32 v{d+r}, s40, v{d+r}
            v_mul_f32 v{d+r+1}, s40, v{d+r+1}
            v_cvt_pk_bf16_f32 v{T}, v{d+r}, v{d+r+1}
            v_lshlrev_b32 v{d+r}, 16, v{T}
            v_and_b32 v{d+r+1}, s41, v{T}
            ''')
    a(f'''
    v_lshlrev_b32 v{T}, 2, v3
    v_sub_u32 v{T}, v2, v{T}
    v_mov_b32 v{T+1}, s42
    ''')
    for r in range(16):
        bb = 8 * (r >> 2) + (r & 3)
        a(f'''
        v_cmp_le_i32 vcc, {bb}, v{T}
        s_nop 1
        v_cndmask_b32 v{S+r}, v{S+r}, v{T+1}, vcc
        v_cndmask_b32 v{S+128+r}, v{T+1}, v{S+128+r}, vcc
        ''')
    for t in range(8):
        a(f'''
        s_cmp_ge_u32 s31, {256 - 32*t}
        s_cbranch_scc1 {name}_tv{t}
        ''')
        for r in range(16):
            a(f'v_mov_b32 v{S+16*t+r}, s42')
        a.label(f'{name}_tv{t}')
    a(f'v_max3_f32 v{T}, v{S}, v{S+1}, v{S+2}')
    for i in range(3, 143, 2):
        a(f'v_max3_f32 v{T}, v{T}, v{S+i}, v{S+i+1}')
    a(f'''
    v_max_f32 v{T}, v{T}, v{S+143}
    v_mov_b32 v{T+1}, v{T}
    s_nop 1
    v_permlane32_swap_b32 v{T}, v{T+1}
    s_nop 1
    v_max_f32 v{T}, v{T}, v{T+1}
    s_mov_b32 s43, 0x3fb8aa3b
    v_mul_f32 v{T}, s43, v{T}
    v_mov_b32 v{T+1}, 0
    v_mov_b32 v{T+2}, 0
    ''')
    for i in range(144):
        a(f'v_fma_f32 v{S+i}, v{S+i}, s43, -v{T}')
        a(f'v_exp_f32 v{S+i}, v{S+i}')
        if i >= 1:
            a(f'v_add_f32 v{T+1+((i-1)&1)}, v{T+1+((i-1)&1)}, v{S+i-1}')
    a(f'''
    s_nop 0
    v_add_f32 v{T+2}, v{T+2}, v{S+143}
    v_add_f32 v{T+1}, v{T+1}, v{T+2}
    v_mov_b32 v{T+2}, v{T+1}
    s_nop 1
    v_permlane32_swap_b32 v{T+1}, v{T+2}
    s_nop 1
    v_add_f32 v{T+1}, v{T+1}, v{T+2}
    v_rcp_f32 v{T+1}, v{T+1}
    s_nop 0
    ''')
    for t in range(9):
        d = S + 16 * t
        for r in range(0, 16, 2):
            a(f'''
            v_mul_f32 v{d+r}, v{d+r}, v{T+1}
            v_mul_f32 v{d+r+1}, v{d+r+1}, v{T+1}
            v_cvt_pk_bf16_f32 v{d+r//2}, v{d+r}, v{d+r+1}
            ''')
        b = VF[t % 3]
        nout = min(2, 8 - t) * 4
        c0 = '0' if t == 0 else f'v[{OA}:{OA+15}]'
        a(f'''
        s_waitcnt vmcnt({nout})
        v_mfma_f32_32x32x16_bf16 v[{OA}:{OA+15}], v[{b}:{b+3}], v[{d}:{d+3}], {c0}
        v_mfma_f32_32x32x16_bf16 v[{OA}:{OA+15}], v[{b+4}:{b+7}], v[{d+4}:{d+7}], v[{OA}:{OA+15}]
        ''')
        if t + 3 < 9:
            vload(t + 3)
    a(f'''
    s_nop 7
    s_nop 7
    v_add_u32 v{T}, s31, v2
    s_movk_i32 s33, 1280
    v_mul_lo_u32 v{T}, v{T}, s33
    v_lshlrev_b32 v{T+1}, 3, v3
    v_add_u32 v{T}, v{T}, v{T+1}
    s_add_u32 s34, s34, {WS_O}
    v_cvt_pk_bf16_f32 v{T+2}, v{OA}, v{OA+1}
    v_cvt_pk_bf16_f32 v{T+3}, v{OA+2}, v{OA+3}
    v_cvt_pk_bf16_f32 v{T+4}, v{OA+4}, v{OA+5}
    v_cvt_pk_bf16_f32 v{T+5}, v{OA+6}, v{OA+7}
    v_cvt_pk_bf16_f32 v{T+6}, v{OA+8}, v{OA+9}
    v_cvt_pk_bf16_f32 v{T+7}, v{OA+10}, v{OA+11}
    buffer_store_dwordx2 v[{T+2}:{T+3}], v{T}, s[24:27], s34 offen
    buffer_store_dwordx2 v[{T+4}:{T+5}], v{T}, s[24:27], s34 offen offset:16
    v_cmp_gt_u32 vcc, 32, v1
    s_and_saveexec_b64 s[44:45], vcc
    buffer_store_dwordx2 v[{T+6}:{T+7}], v{T}, s[24:27], s34 offen offset:32
    s_mov_b64 exec, s[44:45]
    ''')
    a.label(f'{name}_end')
    a('s_endpgm')
    return a.text() + kernel_desc(name, 232, 64)

if __name__ == '__main__':
    print(gen_k2())
```

```python
from asmlib import *
from k1 import WS_QK, WS_VT, WS_H, WS_O, WS_GATE, WS_SIZE

def gen_k3(name='k3_kernel'):
    a = Asm()
    a.lines.append('.text')
    a.lines.append(f'.globl {name}')
    a.lines.append('.p2align 8')
    a.lines.append(f'.type {name},@function')
    a.label(name)
    ACC = [64, 144]
    XF = [16, 32, 48]
    WF = 224
    a(f'''
    s_cmp_ge_u32 s2, 256
    s_cbranch_scc1 {name}_end
    s_load_dwordx2 s[4:5], s[0:1], 16
    s_load_dwordx2 s[6:7], s[0:1], 48
    s_load_dwordx2 s[8:9], s[0:1], 64
    s_load_dwordx2 s[12:13], s[0:1], 80
    v_and_b32 v1, 63, v0
    v_lshrrev_b32 v2, 6, v0
    s_lshr_b32 s28, s2, 3
    s_and_b32 s29, s2, 7
    v_readfirstlane_b32 s30, v2
    s_nop 3
    s_waitcnt lgkmcnt(0)
    s_mov_b32 s16, s4
    s_and_b32 s17, s5, 0xffff
    s_mov_b32 s18, 819200
    s_mov_b32 s19, 0x00020000
    s_mov_b32 s20, s6
    s_and_b32 s21, s7, 0xffff
    s_mov_b32 s22, 2211840
    s_mov_b32 s23, 0x00020000
    s_mov_b32 s24, s12
    s_and_b32 s25, s13, 0xffff
    s_mov_b32 s26, {WS_SIZE}
    s_mov_b32 s27, 0x00020000
    s_mov_b32 s36, s8
    s_and_b32 s37, s9, 0xffff
    s_mov_b32 s38, 2621440
    s_mov_b32 s39, 0x00020000
    ; DMA lane offsets v[4:8]: byte = q*1024+16l ; k = byte/160 ; gran = (byte%160)/16
    s_mul_i32 s31, s29, 160
    s_mov_b32 s32, 0x19999a
    ''')
    for q in range(5):
        a(f'''
        v_lshlrev_b32 v10, 4, v1
        v_add_u32 v10, {q*1024}, v10
        v_lshrrev_b32 v11, 5, v10
        v_mul_u32_u24 v11, s32, v11
        v_lshrrev_b32 v11, 23, v11
        v_mul_u32_u24 v12, 160, v11
        v_sub_u32 v12, v10, v12
        v_mul_u32_u24 v11, 1280, v11
        v_add_u32 v11, v11, v12
        v_add_u32 v{4+q}, s31, v11
        ''')
    a(f'''
    s_lshl_b32 s33, s28, 6
    v_and_b32 v11, 15, v1
    v_add_u32 v11, s33, v11
    v_lshrrev_b32 v12, 4, v1
    v_lshlrev_b32 v12, 4, v12
    v_mul_u32_u24 v9, 1280, v11
    v_add_u32 v9, v9, v12
    v_add_u32 v9, {WS_O}, v9
    v_mul_u32_u24 v10, 3456, v11
    v_add_u32 v10, v10, v12
    v_add_u32 v10, {WS_H}, v10
    v_lshrrev_b32 v12, 4, v1
    v_lshlrev_b32 v12, 3, v12
    v_bfe_u32 v13, v1, 2, 2
    v_add_u32 v12, v12, v13
    v_mul_u32_u24 v12, 160, v12
    v_and_b32 v13, 3, v1
    v_lshlrev_b32 v13, 3, v13
    v_add_u32 v12, v12, v13
    s_mul_i32 s34, s30, 20480
    v_add_u32 v11, s34, v12
    s_mul_i32 s40, s30, {32*1280}
    s_lshl_b32 s41, s30, 6
    ''')
    steps = [(0, i) for i in range(5)] + [(1, i) for i in range(14)]
    NS = len(steps)
    def issue(si):
        part, i = steps[si]
        srdW = 's[16:19]' if part == 0 else 's[20:23]'
        va = 'v9' if part == 0 else 'v10'
        pit = 1280 if part == 0 else 3456
        slot = si % 4
        if part == 1 and i == 0:
            a(f'''
            s_mul_i32 s40, s30, {32*1280}
            s_lshl_b32 s41, s30, 6
            ''')
        for q in range(5):
            a(f'''
            s_add_u32 m0, s34, {slot*5120 + q*1024}
            s_nop 0
            buffer_load_dwordx4 v{4+q}, {srdW}, s40 offen lds
            ''')
        xb = XF[si % 3]
        for M in range(4):
            a(f'''
            s_add_u32 s42, s41, {M*16*pit}
            buffer_load_dwordx4 v[{xb+4*M}:{xb+4*M+3}], {va}, s[24:27], s42 offen
            ''')
        a(f'''
        s_add_u32 s40, s40, {128*1280}
        s_add_u32 s41, s41, 256
        ''')
    issue(0); issue(1)
    for si in range(NS):
        part, i = steps[si]
        if si + 2 < NS:
            issue(si + 2)
            a('s_waitcnt vmcnt(18)')
        elif si + 1 < NS:
            a('s_waitcnt vmcnt(9)')
        else:
            a('s_waitcnt vmcnt(0)')
        slot = si % 4
        for T in range(5):
            for h in range(2):
                a(f'ds_read_b64_tr_b16 v[{WF+4*T+2*h}:{WF+4*T+2*h+1}], v11 offset:{slot*5120 + T*32 + h*640}')
        xb = XF[si % 3]
        first = (i == 0)
        if si == NS - 1:
            a(f's_cmp_ge_u32 s30, 2\ns_cbranch_scc1 {name}_skiplast')
        for T in range(5):
            a(f's_waitcnt lgkmcnt({2*(4-T)})')
            for M in range(4):
                d = ACC[part] + (T * 4 + M) * 4
                c = '0' if first else f'v[{d}:{d+3}]'
                a(f'v_mfma_f32_16x16x32_bf16 v[{d}:{d+3}], v[{WF+4*T}:{WF+4*T+3}], v[{xb+4*M}:{xb+4*M+3}], {c}')
    a(f'''
    {name}_skiplast:
    s_waitcnt lgkmcnt(0)
    s_nop 7
    s_nop 7
    s_barrier
    v_lshlrev_b32 v12, 4, v1
    ''')
    for dM in range(1, 4):
        a(f'''
        s_add_u32 s42, s30, {dM}
        s_and_b32 s42, s42, 3
        s_mul_i32 s43, s42, 30720
        s_add_u32 s43, s43, {(dM-1)*10240}
        v_add_u32 v13, s43, v12
        ''')
        for M in range(4):
            a(f'''
            s_cmp_lg_u32 s42, {M}
            s_cbranch_scc1 {name}_w{dM}_{M}
            ''')
            for part in range(2):
                for T in range(5):
                    d = ACC[part] + (T * 4 + M) * 4
                    a(f'ds_write_b128 v13, v[{d}:{d+3}] offset:{(part*5+T)*1024}')
            a.label(f'{name}_w{dM}_{M}')
    a(f'''
    s_waitcnt lgkmcnt(0)
    s_barrier
    s_mul_i32 s43, s30, 30720
    v_add_u32 v13, s43, v12
    ''')
    for M in range(4):
        a(f'''
        s_cmp_lg_u32 s30, {M}
        s_cbranch_scc1 {name}_o{M}
        ''')
        for part in range(2):
            for T in range(5):
                d = ACC[part] + (T * 4 + M) * 4
                for r in range(4):
                    a(f'v_mov_b32 v{16 + part*20 + T*4 + r}, v{d+r}')
        a.label(f'{name}_o{M}')
    for src in range(3):
        for pt in range(10):
            a(f'ds_read_b128 v[{64+ (src*10+pt)*4}:{64+(src*10+pt)*4+3}], v13 offset:{src*10240 + pt*1024}')
    a(f'''
    s_lshl_b32 s42, s30, 4
    s_add_u32 s42, s42, s33
    v_and_b32 v12, 15, v1
    v_add_u32 v12, s42, v12
    v_lshlrev_b32 v14, 2, v12
    v_add_u32 v14, {WS_GATE}, v14
    buffer_load_dword v15, v14, s[24:27], 0 offen
    s_waitcnt lgkmcnt(0)
    ''')
    for src in range(3):
        for k in range(40):
            a(f'v_add_f32 v{16+k}, v{16+k}, v{64+src*40+k}')
    a(f'''
    v_mul_u32_u24 v12, 1280, v12
    v_lshrrev_b32 v13, 4, v1
    v_lshlrev_b32 v13, 3, v13
    v_add_u32 v12, v12, v13
    s_mov_b32 s45, 0xffff0000
    s_waitcnt vmcnt(0)
    v_sub_f32 v14, 1.0, v15
    v_cvt_pk_bf16_f32 v14, v14, v14
    v_lshlrev_b32 v14, 16, v14
    ''')
    for T in range(5):
        for p in range(2):
            ra = 16 + T*4 + 2*p
            rb = 36 + T*4 + 2*p
            a(f'''
            v_cvt_pk_bf16_f32 v56, v{ra}, v{ra+1}
            v_cvt_pk_bf16_f32 v57, v{rb}, v{rb+1}
            v_lshlrev_b32 v58, 16, v56
            v_and_b32 v59, s45, v56
            v_lshlrev_b32 v60, 16, v57
            v_and_b32 v61, s45, v57
            v_mul_f32 v58, v15, v58
            v_mul_f32 v59, v15, v59
            v_mul_f32 v60, v14, v60
            v_mul_f32 v61, v14, v61
            v_cvt_pk_bf16_f32 v56, v58, v59
            v_cvt_pk_bf16_f32 v57, v60, v61
            v_lshlrev_b32 v58, 16, v56
            v_and_b32 v59, s45, v56
            v_lshlrev_b32 v60, 16, v57
            v_and_b32 v61, s45, v57
            v_add_f32 v58, v58, v60
            v_add_f32 v59, v59, v61
            v_cvt_pk_bf16_f32 v{62+p}, v58, v59
            ''')
        a(f'''
        buffer_store_dwordx2 v[62:63], v12, s[36:39], s31 offen offset:{32*T}
        s_nop 1
        ''')
    a.label(f'{name}_end')
    a('s_endpgm')
    return a.text() + kernel_desc(name, 244, 64)

if __name__ == '__main__':
    print(gen_k3())
```

```python
import sys, os
sys.path.insert(0, os.path.dirname(__file__))
from k1 import gen_k1
from k2 import gen_k2
from k3 import gen_k3
HDR = open('gated_mix__sliding_block__swiglu_ffn__prompt.s.ref').read().split('; Override')[0]
launch = '''; @launch kernel=k1_kernel grid=(256,1,1) block=(512,1,1) lds=131072
; @launch kernel=k2_kernel grid=(512,1,1) block=(256,1,1) lds=0
; @launch kernel=k3_kernel grid=(256,1,1) block=(256,1,1) lds=122880
'''
txt = HDR + launch + '.amdgcn_target "amdgcn-amd-amdhsa--gfx950"\n' + gen_k1() + gen_k2() + gen_k3()
out = sys.argv[1] if len(sys.argv) > 1 else 'gated_mix__sliding_block__swiglu_ffn__prompt.s'
open(out, 'w').write(txt)
print('wrote', out, len(txt))
```

```python
from asmlib import *

WS_QK = 0
WS_VT = 5242880
WS_H = 8 << 20
WS_O = 16 << 20
WS_GATE = 20 << 20
WS_SIZE = 24 << 20

NSTAGE = 20
NBUF = 4
STAGE_BYTES = 32768

def gen_k1(name='k1_kernel'):
    a = Asm()
    a.lines.append('.text')
    a.lines.append(f'.globl {name}')
    a.lines.append('.p2align 8')
    a.lines.append(f'.type {name},@function')
    a.label(name)
    a(f'''
    s_cmp_ge_u32 s2, 224
    s_cbranch_scc1 {name}_gate
    s_load_dwordx4 s[4:7], s[0:1], 0
    s_load_dwordx4 s[8:11], s[0:1], 32
    s_load_dwordx2 s[12:13], s[0:1], 80
    v_and_b32 v1, 63, v0
    v_lshrrev_b32 v20, 6, v0
    s_and_b32 s28, s2, 7
    s_mul_i32 s28, s28, 28
    s_lshr_b32 s29, s2, 3
    s_add_u32 s29, s29, s28
    s_and_b32 s28, s29, 15
    s_lshr_b32 s29, s29, 4
    v_readfirstlane_b32 s30, v20
    s_nop 3
    s_lshr_b32 s31, s30, 1
    s_and_b32 s32, s30, 1
    s_waitcnt lgkmcnt(0)
    ; SRD X
    s_mov_b32 s16, s4
    s_and_b32 s17, s5, 0xffff
    s_mov_b32 s18, 2621440
    s_mov_b32 s19, 0x00020000
    s_mov_b32 s24, s12
    s_and_b32 s25, s13, 0xffff
    s_mov_b32 s26, {WS_SIZE}
    s_mov_b32 s27, 0x00020000
    s_mov_b32 s23, 0x00020000
    s_cmp_ge_u32 s29, 5
    s_cbranch_scc1 {name}_ffn_setup
    s_mov_b32 s20, s6
    s_and_b32 s21, s7, 0xffff
    s_mov_b32 s22, 2457600
    s_mov_b32 s33, 3840
    s_mul_i32 s34, s29, 768
    s_cmp_ge_u32 s30, 4
    s_cselect_b32 s41, 384, 0
    s_add_u32 s34, s34, s41
    s_branch {name}_setup_done
    {name}_ffn_setup:
    s_cmp_ge_u32 s30, 4
    s_cselect_b32 s20, s10, s8
    s_cselect_b32 s21, s11, s9
    s_and_b32 s21, s21, 0xffff
    s_mov_b32 s22, 2211840
    s_mov_b32 s33, 3456
    s_sub_u32 s34, s29, 5
    s_mul_i32 s34, s34, 384
    {name}_setup_done:
    ''')
    a('''
    v_lshrrev_b32 v20, 4, v1
    v_lshlrev_b32 v20, 1, v20
    v_mov_b32 v21, 0x78
    v_lshrrev_b32 v21, v20, v21
    v_and_b32 v21, 3, v21
    v_and_b32 v22, 3, v1
    v_xor_b32 v21, v21, v22
    v_lshlrev_b32 v21, 4, v21
    s_lshl_b32 s41, s28, 7
    s_lshl_b32 s42, s30, 4
    s_add_u32 s41, s41, s42
    v_lshrrev_b32 v22, 2, v1
    v_add_u32 v22, s41, v22
    s_movk_i32 s42, 1280
    v_mul_lo_u32 v22, v22, s42
    v_add_u32 v2, v22, v21
    v_lshrrev_b32 v20, 3, v1
    v_mul_lo_u32 v20, v20, s33
    v_lshrrev_b32 v21, 4, v1
    v_and_b32 v21, 1, v21
    v_lshlrev_b32 v21, 1, v21
    v_and_b32 v22, 7, v1
    v_xor_b32 v21, v21, v22
    v_lshlrev_b32 v21, 4, v21
    s_and_b32 s42, s30, 3
    s_mul_i32 s42, s42, 3
    s_lshr_b32 s45, s30, 2
    s_mul_i32 s45, s45, 3
    ''')
    for i in range(3):
        a(f'''
        s_add_u32 s43, s42, {i}
        s_lshr_b32 s44, s43, 2
        s_and_b32 s43, s43, 3
        ; s44 = group, s43 = q
        s_and_b32 s46, s43, 1
        s_lshl_b32 s46, s46, 6
        v_xor_b32 v22, s46, v21
        v_add_u32 v22, v22, v20
        s_lshl_b32 s46, s43, 3
        s_mul_i32 s46, s46, s33
        s_lshl_b32 s47, s44, 7
        s_add_u32 s46, s46, s47
        s_add_u32 s46, s46, s34
        v_add_u32 v{3+i}, s46, v22
        s_add_u32 s44, s44, s45
        s_lshl_b32 s44, s44, 12
        s_lshl_b32 s43, s43, 10
        s_add_u32 s44, s44, s43
        s_add_u32 s{38+i}, s44, 8192
        ''')
    a('''
    s_lshl_b32 s37, s30, 10
    v_and_b32 v20, 15, v1
    v_lshrrev_b32 v21, 2, v20
    v_lshlrev_b32 v21, 1, v21
    v_mov_b32 v22, 0x78
    v_lshrrev_b32 v22, v21, v22
    v_and_b32 v22, 3, v22
    v_lshrrev_b32 v23, 4, v1
    v_xor_b32 v22, v22, v23
    v_lshlrev_b32 v22, 4, v22
    s_lshl_b32 s41, s32, 6
    v_add_u32 v20, s41, v20
    v_lshlrev_b32 v20, 6, v20
    v_add_u32 v6, v20, v22
    v_add_u32 v7, 0x10000, v6
    v_lshrrev_b32 v20, 4, v1
    v_bfe_u32 v21, v1, 2, 2
    v_lshlrev_b32 v22, 3, v20
    v_add_u32 v22, v22, v21
    v_lshlrev_b32 v22, 7, v22
    v_and_b32 v23, 1, v1
    v_lshlrev_b32 v23, 3, v23
    v_add_u32 v22, v22, v23
    v_add_u32 v22, 8192, v22
    v_lshrrev_b32 v23, 1, v21
    v_lshlrev_b32 v23, 1, v23
    v_and_b32 v24, 1, v20
    v_lshlrev_b32 v24, 2, v24
    v_or_b32 v23, v23, v24
    v_bfe_u32 v24, v1, 1, 1
    v_xor_b32 v23, v23, v24
    s_mul_i32 s41, s31, 3
    ''')
    for j in range(6):
        add = (j % 3) + (12 if j >= 3 else 0)
        a(f'''
        s_add_u32 s42, s41, {add}
        s_lshr_b32 s43, s42, 2
        s_and_b32 s42, s42, 3
        s_lshl_b32 s42, s42, 1
        s_lshl_b32 s43, s43, 12
        v_xor_b32 v24, s42, v23
        v_lshlrev_b32 v24, 4, v24
        v_add_u32 v24, v24, v22
        v_add_u32 v{8+j}, s43, v24
        v_add_u32 v{14+j}, 0x10000, v{8+j}
        ''')
    a('''
    s_mov_b32 s35, 0
    s_mov_b32 s36, 0
    s_lshl_b32 s47, s33, 5
    ''')
    def dma(stage):
        b = stage % NBUF
        off = b * STAGE_BYTES
        a(f'''
        s_add_u32 m0, s37, {off}
        s_nop 0
        buffer_load_dwordx4 v2, s[16:19], s35 offen lds
        s_add_u32 m0, s38, {off}
        s_add_u32 s35, s35, 64
        buffer_load_dwordx4 v3, s[20:23], s36 offen lds
        s_add_u32 m0, s39, {off}
        s_nop 0
        buffer_load_dwordx4 v4, s[20:23], s36 offen lds
        s_add_u32 m0, s40, {off}
        s_nop 0
        buffer_load_dwordx4 v5, s[20:23], s36 offen lds
        s_add_u32 s36, s36, s47
        ''')
    XF = [128, 168]
    WF = [144, 184]
    def reads(stage):
        b = stage % NBUF
        st = stage & 1
        hi = b >= 2
        off = (b & 1) * STAGE_BYTES
        out = []
        seq = []
        for M in range(4):
            seq.append(f'ds_read_b128 v[{XF[st]+4*M}:{XF[st]+4*M+3}], v{7 if hi else 6} offset:{off + M*1024}')
        wl = []
        for j in range(6):
            for i in range(2):
                wl.append(f'ds_read_b64_tr_b16 v[{WF[st]+4*j+2*i}:{WF[st]+4*j+2*i+1}], v{(14 if hi else 8)+j} offset:{off + i*512}')
        out = wl[0:2] + seq + wl[2:]
        return out
    for s in range(4):
        dma(s)
    a('''
    s_waitcnt vmcnt(12)
    s_barrier
    ''')
    for r in reads(0):
        a(r)
    for s in range(NSTAGE):
        st = s & 1
        rem = NSTAGE - 1 - s
        vm = 4 * max(0, min(3, rem) - 1)
        a(f'''
        s_waitcnt vmcnt({vm}) lgkmcnt(0)
        s_barrier
        ''')
        if s + 4 < NSTAGE:
            dma(s + 4)
        rd = reads(s + 1) if s + 1 < NSTAGE else []
        k = 0
        idx = 0
        for j in range(6):
            for M in range(4):
                d = 32 + (j * 4 + M) * 4
                c = '0' if s == 0 else f'v[{d}:{d+3}]'
                a(f'v_mfma_f32_16x16x32_bf16 v[{d}:{d+3}], v[{WF[st]+4*j}:{WF[st]+4*j+3}], v[{XF[st]+4*M}:{XF[st]+4*M+3}], {c}')
                idx += 1
                while k < len(rd) and k < (idx * 2 + 2) // 3:
                    a(rd[k]); k += 1
        while k < len(rd):
            a(rd[k]); k += 1
    a('''
    s_nop 7
    s_nop 7
    ; v20 = m base row (rb*128 + 64wm + (l&15)), v21 = 4*(l>>4)
    v_and_b32 v20, 15, v1
    s_lshl_b32 s41, s28, 7
    s_lshl_b32 s42, s32, 6
    s_add_u32 s41, s41, s42
    v_add_u32 v20, s41, v20
    v_lshrrev_b32 v21, 4, v1
    v_lshlrev_b32 v21, 2, v21
    s_mul_i32 s41, s31, 48
    s_cmp_ge_u32 s29, 5
    s_cbranch_scc1 ''' + name + '''_epi_ffn
    ''')
    a(f'''
    s_mul_i32 s42, s29, 384
    s_add_u32 s41, s41, s42
    v_mul_u32_u24 v22, 40, v20
    v_lshrrev_b32 v23, 5, v20
    v_mul_u32_u24 v23, 1280, v23
    v_bfe_u32 v24, v20, 2, 1
    v_lshlrev_b32 v24, 5, v24
    v_add_u32 v23, v23, v24
    v_bfe_u32 v24, v20, 3, 2
    v_lshlrev_b32 v24, 3, v24
    v_add_u32 v23, v23, v24
    v_and_b32 v24, 3, v20
    v_lshlrev_b32 v24, 1, v24
    v_add_u32 v23, v23, v24
    v_add_u32 v23, {WS_VT}, v23
    s_mov_b32 s46, 0xcccd
    ''')
    for j in range(6):
        add = (192 if j >= 3 else 0) + 16 * (j % 3)
        a(f'''
        s_add_u32 s42, s41, {add}
        s_cmp_ge_u32 s42, 1280
        s_cselect_b32 s43, 1280, 0
        s_sub_u32 s43, s42, s43
        v_add_u32 v25, s43, v21
        v_mul_u32_u24 v26, s46, v25
        v_lshrrev_b32 v26, 20, v26
        v_mul_u32_u24 v27, 20, v26
        v_sub_u32 v27, v25, v27
        s_cmp_ge_u32 s42, 1280
        s_cbranch_scc1 {name}_v_{j}
        v_mul_u32_u24 v26, {2048*40}, v26
        v_lshlrev_b32 v27, 1, v27
        v_add3_u32 v26, v26, v27, v22
        ''')
        for M in range(4):
            d = 32 + (j * 4 + M) * 4
            a(f'''
            v_cvt_pk_bf16_f32 v128, v{d}, v{d+1}
            v_cvt_pk_bf16_f32 v129, v{d+2}, v{d+3}
            buffer_store_dwordx2 v[128:129], v26, s[24:27], 0 offen offset:{M*16*40}
            s_nop 1
            ''')
        a(f'''
        s_branch {name}_n_{j}
        {name}_v_{j}:
        v_mul_u32_u24 v26, {64*1280}, v26
        v_lshlrev_b32 v27, 6, v27
        v_add3_u32 v26, v26, v27, v23
        ''')
        for M in range(4):
            d = 32 + (j * 4 + M) * 4
            o = (M & 1) * 16 + (M >> 1) * 1280
            a(f'''
            v_cvt_pk_bf16_f32 v128, v{d}, v{d+1}
            v_cvt_pk_bf16_f32 v129, v{d+2}, v{d+3}
            buffer_store_short v128, v26, s[24:27], 0 offen offset:{o}
            buffer_store_short_d16_hi v128, v26, s[24:27], 0 offen offset:{o+64}
            buffer_store_short v129, v26, s[24:27], 0 offen offset:{o+128}
            buffer_store_short_d16_hi v129, v26, s[24:27], 0 offen offset:{o+192}
            s_nop 1
            ''')
        a(f'{name}_n_{j}:')
    a(f'''
    s_branch {name}_end
    {name}_epi_ffn:
    s_sub_u32 s42, s29, 5
    s_mul_i32 s42, s42, 192
    s_add_u32 s41, s41, s42
    s_lshl_b32 s41, s41, 1
    s_add_u32 s41, s41, {WS_H}
    s_movk_i32 s43, 3456
    v_mul_lo_u32 v22, v20, s43
    v_lshlrev_b32 v23, 1, v21
    v_add_u32 v22, v22, v23
    s_mov_b32 s44, 0xbfb8aa3b
    s_mov_b32 s45, 0xffff0000
    ''')
    for M in range(4):
        a(f'v_add_u32 v24, {M*16*3456}, v22')
        for i in range(3):
            dg = 32 + (i * 4 + M) * 4
            du = 32 + ((i + 3) * 4 + M) * 4
            for p in range(2):
                T = 131 + p * 8
                a(f'''
                v_cvt_pk_bf16_f32 v{T}, v{dg+2*p}, v{dg+2*p+1}
                v_cvt_pk_bf16_f32 v{T+1}, v{du+2*p}, v{du+2*p+1}
                v_lshlrev_b32 v{T+2}, 16, v{T}
                v_and_b32 v{T+3}, s45, v{T}
                v_mul_f32 v{T+4}, s44, v{T+2}
                v_mul_f32 v{T+5}, s44, v{T+3}
                v_exp_f32 v{T+4}, v{T+4}
                v_exp_f32 v{T+5}, v{T+5}
                s_nop 0
                v_add_f32 v{T+4}, 1.0, v{T+4}
                v_add_f32 v{T+5}, 1.0, v{T+5}
                v_rcp_f32 v{T+4}, v{T+4}
                v_rcp_f32 v{T+5}, v{T+5}
                s_nop 0
                v_mul_f32 v{T+2}, v{T+2}, v{T+4}
                v_mul_f32 v{T+3}, v{T+3}, v{T+5}
                v_cvt_pk_bf16_f32 v{T}, v{T+2}, v{T+3}
                v_lshlrev_b32 v{T+2}, 16, v{T}
                v_and_b32 v{T+3}, s45, v{T}
                v_lshlrev_b32 v{T+4}, 16, v{T+1}
                v_and_b32 v{T+5}, s45, v{T+1}
                v_mul_f32 v{T+2}, v{T+2}, v{T+4}
                v_mul_f32 v{T+3}, v{T+3}, v{T+5}
                v_cvt_pk_bf16_f32 v{128+p}, v{T+2}, v{T+3}
                ''')
            a(f'''
            buffer_store_dwordx2 v[128:129], v24, s[24:27], s41 offen offset:{32*i}
            s_nop 1
            ''')
    a(f'{name}_end:')
    a('s_endpgm')
    a(f'''
    {name}_gate:
    s_cmp_ge_u32 s2, 256
    s_cbranch_scc1 {name}_end
    s_load_dwordx2 s[4:5], s[0:1], 0
    s_load_dwordx2 s[6:7], s[0:1], 56
    s_load_dwordx2 s[12:13], s[0:1], 80
    v_lshrrev_b32 v2, 3, v0
    v_and_b32 v3, 7, v0
    s_sub_u32 s28, s2, 224
    s_lshl_b32 s28, s28, 6
    v_add_u32 v2, s28, v2
    v_mul_u32_u24 v4, 1280, v2
    v_mul_u32_u24 v5, 160, v3
    v_add_u32 v4, v4, v5
    s_waitcnt lgkmcnt(0)
    s_mov_b32 s16, s4
    s_and_b32 s17, s5, 0xffff
    s_mov_b32 s18, 2621440
    s_mov_b32 s19, 0x00020000
    s_mov_b32 s20, s6
    s_and_b32 s21, s7, 0xffff
    s_mov_b32 s22, 1280
    s_mov_b32 s23, 0x00020000
    s_mov_b32 s24, s12
    s_and_b32 s25, s13, 0xffff
    s_mov_b32 s26, {WS_SIZE}
    s_mov_b32 s27, 0x00020000
    s_mov_b32 s45, 0xffff0000
    ''')
    for c in range(10):
        a(f'buffer_load_dwordx4 v[{32+4*c}:{35+4*c}], v4, s[16:19], 0 offen offset:{16*c}')
        a(f'buffer_load_dwordx4 v[{80+4*c}:{83+4*c}], v5, s[20:23], 0 offen offset:{16*c}')
    a('v_mov_b32 v6, 0\nv_mov_b32 v7, 0\ns_waitcnt vmcnt(0)')
    for c in range(40):
        a(f'''
        v_lshlrev_b32 v8, 16, v{32+c}
        v_and_b32 v9, s45, v{32+c}
        v_lshlrev_b32 v10, 16, v{80+c}
        v_and_b32 v11, s45, v{80+c}
        v_mul_f32 v8, v8, v10
        v_mul_f32 v9, v9, v11
        v_cvt_pk_bf16_f32 v8, v8, v9
        v_lshlrev_b32 v9, 16, v8
        v_and_b32 v8, s45, v8
        v_add_f32 v6, v6, v9
        v_add_f32 v7, v7, v8
        ''')
    a(f'''
    v_add_f32 v6, v6, v7
    ds_swizzle_b32 v7, v6 offset:0x041F
    s_waitcnt lgkmcnt(0)
    v_add_f32 v6, v6, v7
    ds_swizzle_b32 v7, v6 offset:0x081F
    s_waitcnt lgkmcnt(0)
    v_add_f32 v6, v6, v7
    ds_swizzle_b32 v7, v6 offset:0x101F
    s_waitcnt lgkmcnt(0)
    v_add_f32 v6, v6, v7
    v_cvt_pk_bf16_f32 v6, v6, v6
    v_lshlrev_b32 v6, 16, v6
    v_mul_f32 v6, 0xbfb8aa3b, v6
    v_exp_f32 v6, v6
    s_nop 0
    v_add_f32 v6, 1.0, v6
    v_rcp_f32 v6, v6
    s_nop 0
    v_cvt_pk_bf16_f32 v6, v6, v6
    v_lshlrev_b32 v6, 16, v6
    v_lshlrev_b32 v2, 2, v2
    v_add_u32 v2, {WS_GATE}, v2
    v_cmp_eq_u32 vcc, 0, v3
    s_and_saveexec_b64 s[44:45], vcc
    buffer_store_dword v6, v2, s[24:27], 0 offen
    s_endpgm
    ''')
    return a.text() + kernel_desc(name, 208, 64)

if __name__ == '__main__':
    print(gen_k1())
```

```python
from asmlib import *
from k1 import WS_QK, WS_VT, WS_H, WS_O, WS_GATE, WS_SIZE

def gen_k2(name='k2_kernel'):
    a = Asm()
    a.lines.append('.text')
    a.lines.append(f'.globl {name}')
    a.lines.append('.p2align 8')
    a.lines.append(f'.type {name},@function')
    a.label(name)
    S = 64
    QF = 8
    KF = [16, 24, 32]
    VF = [208, 216, 224]
    OA = 40
    a(f'''
    s_cmp_ge_u32 s2, 512
    s_cbranch_scc1 {name}_end
    s_load_dwordx2 s[12:13], s[0:1], 80
    v_and_b32 v1, 63, v0
    v_lshrrev_b32 v2, 6, v0
    s_and_b32 s28, s2, 31
    s_lshr_b32 s29, s2, 5
    v_readfirstlane_b32 s30, v2
    s_nop 3
    s_lshl_b32 s31, s29, 7
    s_lshl_b32 s32, s30, 5
    s_add_u32 s31, s31, s32
    ; s31 = q0 ; s28 = head
    s_waitcnt lgkmcnt(0)
    s_mov_b32 s24, s12
    s_and_b32 s25, s13, 0xffff
    s_mov_b32 s26, {WS_SIZE}
    s_mov_b32 s27, 0x00020000
    v_and_b32 v2, 31, v1
    v_lshrrev_b32 v3, 5, v1
    v_mul_u32_u24 v4, 40, v2
    v_lshlrev_b32 v5, 4, v3
    v_add_u32 v6, 32, v4
    v_add_u32 v4, v4, v5
    v_lshlrev_b32 v5, 30, v3
    v_add_u32 v6, v6, v5
    s_mul_i32 s34, s28, {2048*40}
    s_mul_i32 s35, s31, 40
    s_add_u32 s35, s35, s34
    buffer_load_dwordx4 v[{QF}:{QF+3}], v4, s[24:27], s35 offen
    buffer_load_dwordx2 v[{QF+4}:{QF+5}], v6, s[24:27], s35 offen
    s_sub_u32 s37, s35, {256*40}
    s_add_u32 s37, s37, 2621440
    s_cmp_lt_u32 s31, 256
    s_cselect_b32 s46, 0x40000000, 0
    v_lshlrev_b32 v5, 6, v2
    v_lshlrev_b32 v7, 5, v3
    v_add_u32 v5, v5, v7
    v_add_u32 v5, {WS_VT}, v5
    s_lshl_b32 s39, s28, 6
    s_lshr_b32 s38, s31, 5
    s_add_u32 s39, s39, s38
    s_sub_u32 s39, s39, 8
    s_mul_i32 s39, s39, 1280
    s_mul_i32 s34, s28, 40
    v_mov_b32 v{QF+6}, 0
    v_mov_b32 v{QF+7}, 0
    v_mov_b32 v22, 0
    v_mov_b32 v23, 0
    v_mov_b32 v30, 0
    v_mov_b32 v31, 0
    v_mov_b32 v38, 0
    v_mov_b32 v39, 0
        ''')
    def kload(t):
        b = KF[t % 3]
        a(f'''
        s_cmp_lt_u32 s31, {256-32*t}
        s_cselect_b32 s47, 0x7f000000, s37
        buffer_load_dwordx4 v[{b}:{b+3}], v4, s[24:27], s47 offen
        buffer_load_dwordx2 v[{b+4}:{b+5}], v6, s[24:27], s47 offen
        s_add_u32 s37, s37, 1280
        ''')
    def vload(t):
        b = VF[t % 3]
        a(f'''
        s_cmp_lt_u32 s31, {256-32*t}
        s_cselect_b32 s47, 0x7f000000, s39
        buffer_load_dwordx4 v[{b}:{b+3}], v5, s[24:27], s47 offen
        buffer_load_dwordx4 v[{b+4}:{b+7}], v5, s[24:27], s47 offen offset:16
        s_add_u32 s39, s39, 1280
        ''')
    kload(0); kload(1); kload(2)
    a(f'''
    s_waitcnt vmcnt(6)
    s_mov_b32 s40, 0x3e64f92e
    s_mov_b32 s41, 0xffff0000
    s_mov_b32 s42, 0xf149f2ca
    ''')
    for t in range(9):
        b = KF[t % 3]
        d = S + 16 * t
        nout = min(2, 8 - t) * 2
        a(f'''
        s_waitcnt vmcnt({nout})
        v_mfma_f32_32x32x16_bf16 v[{d}:{d+15}], v[{b}:{b+3}], v[{QF}:{QF+3}], 0
        v_mfma_f32_32x32x16_bf16 v[{d}:{d+15}], v[{b+4}:{b+7}], v[{QF+4}:{QF+7}], v[{d}:{d+15}]
        ''')
        if t + 3 < 9:
            kload(t + 3)
    for t in range(3):
        vload(t)
    a('s_nop 7\ns_nop 7')
    T = 56
    for t in range(9):
        d = S + 16 * t
        for r in range(0, 16, 2):
            a(f'''
            v_cvt_pk_bf16_f32 v{T}, v{d+r}, v{d+r+1}
            v_lshlrev_b32 v{d+r}, 16, v{T}
            v_and_b32 v{d+r+1}, s41, v{T}
            v_mul_f32 v{d+r}, s40, v{d+r}
            v_mul_f32 v{d+r+1}, s40, v{d+r+1}
            v_cvt_pk_bf16_f32 v{T}, v{d+r}, v{d+r+1}
            v_lshlrev_b32 v{d+r}, 16, v{T}
            v_and_b32 v{d+r+1}, s41, v{T}
            ''')
    a(f'''
    v_lshlrev_b32 v{T}, 2, v3
    v_sub_u32 v{T}, v2, v{T}
    v_mov_b32 v{T+1}, s42
    ''')
    for r in range(16):
        bb = 8 * (r >> 2) + (r & 3)
        a(f'''
        v_cmp_le_i32 vcc, {bb}, v{T}
        s_nop 1
        v_cndmask_b32 v{S+r}, v{S+r}, v{T+1}, vcc
        v_cndmask_b32 v{S+128+r}, v{T+1}, v{S+128+r}, vcc
        ''')
    for t in range(8):
        a(f'''
        s_cmp_ge_u32 s31, {256 - 32*t}
        s_cbranch_scc1 {name}_tv{t}
        ''')
        for r in range(16):
            a(f'v_mov_b32 v{S+16*t+r}, s42')
        a.label(f'{name}_tv{t}')
    a(f'v_max3_f32 v{T}, v{S}, v{S+1}, v{S+2}')
    for i in range(3, 143, 2):
        a(f'v_max3_f32 v{T}, v{T}, v{S+i}, v{S+i+1}')
    a(f'''
    v_max_f32 v{T}, v{T}, v{S+143}
    v_mov_b32 v{T+1}, v{T}
    s_nop 1
    v_permlane32_swap_b32 v{T}, v{T+1}
    s_nop 1
    v_max_f32 v{T}, v{T}, v{T+1}
    s_mov_b32 s43, 0x3fb8aa3b
    v_mul_f32 v{T}, s43, v{T}
    v_mov_b32 v{T+1}, 0
    v_mov_b32 v{T+2}, 0
    ''')
    for i in range(144):
        a(f'v_fma_f32 v{S+i}, v{S+i}, s43, -v{T}')
        a(f'v_exp_f32 v{S+i}, v{S+i}')
        if i >= 1:
            a(f'v_add_f32 v{T+1+((i-1)&1)}, v{T+1+((i-1)&1)}, v{S+i-1}')
    a(f'''
    s_nop 0
    v_add_f32 v{T+2}, v{T+2}, v{S+143}
    v_add_f32 v{T+1}, v{T+1}, v{T+2}
    v_mov_b32 v{T+2}, v{T+1}
    s_nop 1
    v_permlane32_swap_b32 v{T+1}, v{T+2}
    s_nop 1
    v_add_f32 v{T+1}, v{T+1}, v{T+2}
    v_rcp_f32 v{T+1}, v{T+1}
    s_nop 0
    ''')
    for t in range(9):
        d = S + 16 * t
        for r in range(0, 16, 2):
            a(f'''
            v_mul_f32 v{d+r}, v{d+r}, v{T+1}
            v_mul_f32 v{d+r+1}, v{d+r+1}, v{T+1}
            v_cvt_pk_bf16_f32 v{d+r//2}, v{d+r}, v{d+r+1}
            ''')
        b = VF[t % 3]
        nout = min(2, 8 - t) * 2
        c0 = '0' if t == 0 else f'v[{OA}:{OA+15}]'
        a(f'''
        s_waitcnt vmcnt({nout})
        v_mfma_f32_32x32x16_bf16 v[{OA}:{OA+15}], v[{b}:{b+3}], v[{d}:{d+3}], {c0}
        v_mfma_f32_32x32x16_bf16 v[{OA}:{OA+15}], v[{b+4}:{b+7}], v[{d+4}:{d+7}], v[{OA}:{OA+15}]
        ''')
        if t + 3 < 9:
            vload(t + 3)
    a(f'''
    s_nop 7
    s_nop 7
    v_add_u32 v{T}, s31, v2
    s_movk_i32 s33, 1280
    v_mul_lo_u32 v{T}, v{T}, s33
    v_lshlrev_b32 v{T+1}, 3, v3
    v_add_u32 v{T}, v{T}, v{T+1}
    s_add_u32 s34, s34, {WS_O}
    v_cvt_pk_bf16_f32 v{T+2}, v{OA}, v{OA+1}
    v_cvt_pk_bf16_f32 v{T+3}, v{OA+2}, v{OA+3}
    v_cvt_pk_bf16_f32 v{T+4}, v{OA+4}, v{OA+5}
    v_cvt_pk_bf16_f32 v{T+5}, v{OA+6}, v{OA+7}
    v_cvt_pk_bf16_f32 v{T+6}, v{OA+8}, v{OA+9}
    v_cvt_pk_bf16_f32 v{T+7}, v{OA+10}, v{OA+11}
    buffer_store_dwordx2 v[{T+2}:{T+3}], v{T}, s[24:27], s34 offen
    buffer_store_dwordx2 v[{T+4}:{T+5}], v{T}, s[24:27], s34 offen offset:16
    v_cmp_gt_u32 vcc, 32, v1
    s_and_saveexec_b64 s[44:45], vcc
    buffer_store_dwordx2 v[{T+6}:{T+7}], v{T}, s[24:27], s34 offen offset:32
    s_mov_b64 exec, s[44:45]
    ''')
    a.label(f'{name}_end')
    a('s_endpgm')
    return a.text() + kernel_desc(name, 232, 64)

if __name__ == '__main__':
    print(gen_k2())
```

```python
from asmlib import *
from k1 import WS_QK, WS_VT, WS_H, WS_O, WS_GATE, WS_SIZE

def gen_k3(name='k3_kernel'):
    a = Asm()
    a.lines.append('.text')
    a.lines.append(f'.globl {name}')
    a.lines.append('.p2align 8')
    a.lines.append(f'.type {name},@function')
    a.label(name)
    ACC = [64, 144]
    XF = [16, 32, 48]
    WF = 224
    a(f'''
    s_cmp_ge_u32 s2, 256
    s_cbranch_scc1 {name}_end
    s_load_dwordx2 s[4:5], s[0:1], 16
    s_load_dwordx2 s[6:7], s[0:1], 48
    s_load_dwordx2 s[8:9], s[0:1], 64
    s_load_dwordx2 s[12:13], s[0:1], 80
    v_and_b32 v1, 63, v0
    v_lshrrev_b32 v2, 6, v0
    s_and_b32 s28, s2, 7
    s_lshl_b32 s28, s28, 2
    s_bfe_u32 s29, s2, 0x20003
    s_add_u32 s28, s28, s29
    s_lshr_b32 s29, s2, 5
    v_readfirstlane_b32 s30, v2
    s_nop 3
    s_waitcnt lgkmcnt(0)
    s_mov_b32 s16, s4
    s_and_b32 s17, s5, 0xffff
    s_mov_b32 s18, 819200
    s_mov_b32 s19, 0x00020000
    s_mov_b32 s20, s6
    s_and_b32 s21, s7, 0xffff
    s_mov_b32 s22, 2211840
    s_mov_b32 s23, 0x00020000
    s_mov_b32 s24, s12
    s_and_b32 s25, s13, 0xffff
    s_mov_b32 s26, {WS_SIZE}
    s_mov_b32 s27, 0x00020000
    s_mov_b32 s36, s8
    s_and_b32 s37, s9, 0xffff
    s_mov_b32 s38, 2621440
    s_mov_b32 s39, 0x00020000
    ; DMA lane offsets v[4:8]: byte = q*1024+16l ; k = byte/160 ; gran = (byte%160)/16
    s_mul_i32 s31, s29, 160
    s_mov_b32 s32, 0x19999a
    ''')
    for q in range(5):
        a(f'''
        v_lshlrev_b32 v10, 4, v1
        v_add_u32 v10, {q*1024}, v10
        v_lshrrev_b32 v11, 5, v10
        v_mul_u32_u24 v11, s32, v11
        v_lshrrev_b32 v11, 23, v11
        v_mul_u32_u24 v12, 160, v11
        v_sub_u32 v12, v10, v12
        v_mul_u32_u24 v11, 1280, v11
        v_add_u32 v11, v11, v12
        v_add_u32 v{4+q}, s31, v11
        ''')
    a(f'''
    s_lshl_b32 s33, s28, 6
    v_and_b32 v11, 15, v1
    v_add_u32 v11, s33, v11
    v_lshrrev_b32 v12, 4, v1
    v_lshlrev_b32 v12, 4, v12
    v_mul_u32_u24 v9, 1280, v11
    v_add_u32 v9, v9, v12
    v_add_u32 v9, {WS_O}, v9
    v_mul_u32_u24 v10, 3456, v11
    v_add_u32 v10, v10, v12
    v_add_u32 v10, {WS_H}, v10
    v_lshrrev_b32 v12, 4, v1
    v_lshlrev_b32 v12, 3, v12
    v_bfe_u32 v13, v1, 2, 2
    v_add_u32 v12, v12, v13
    v_mul_u32_u24 v12, 160, v12
    v_and_b32 v13, 3, v1
    v_lshlrev_b32 v13, 3, v13
    v_add_u32 v12, v12, v13
    s_mul_i32 s34, s30, 20480
    v_add_u32 v11, s34, v12
    s_mul_i32 s40, s30, {32*1280}
    s_lshl_b32 s41, s30, 6
    ''')
    steps = [(0, i) for i in range(5)] + [(1, i) for i in range(14)]
    NS = len(steps)
    def issue(si):
        part, i = steps[si]
        srdW = 's[16:19]' if part == 0 else 's[20:23]'
        va = 'v9' if part == 0 else 'v10'
        pit = 1280 if part == 0 else 3456
        slot = si % 4
        if part == 1 and i == 0:
            a(f'''
            s_mul_i32 s40, s30, {32*1280}
            s_lshl_b32 s41, s30, 6
            ''')
        for q in range(5):
            a(f'''
            s_add_u32 m0, s34, {slot*5120 + q*1024}
            s_nop 0
            buffer_load_dwordx4 v{4+q}, {srdW}, s40 offen lds
            ''')
        xb = XF[si % 3]
        for M in range(4):
            a(f'''
            s_add_u32 s42, s41, {M*16*pit}
            buffer_load_dwordx4 v[{xb+4*M}:{xb+4*M+3}], {va}, s[24:27], s42 offen
            ''')
        a(f'''
        s_add_u32 s40, s40, {128*1280}
        s_add_u32 s41, s41, 256
        ''')
    issue(0); issue(1)
    for si in range(NS):
        part, i = steps[si]
        if si + 2 < NS:
            issue(si + 2)
            a('s_waitcnt vmcnt(18)')
        elif si + 1 < NS:
            a('s_waitcnt vmcnt(9)')
        else:
            a('s_waitcnt vmcnt(0)')
        slot = si % 4
        for T in range(5):
            for h in range(2):
                a(f'ds_read_b64_tr_b16 v[{WF+4*T+2*h}:{WF+4*T+2*h+1}], v11 offset:{slot*5120 + T*32 + h*640}')
        xb = XF[si % 3]
        first = (i == 0)
        if si == NS - 1:
            a(f's_cmp_ge_u32 s30, 2\ns_cbranch_scc1 {name}_skiplast')
        for T in range(5):
            a(f's_waitcnt lgkmcnt({2*(4-T)})')
            for M in range(4):
                d = ACC[part] + (T * 4 + M) * 4
                c = '0' if first else f'v[{d}:{d+3}]'
                a(f'v_mfma_f32_16x16x32_bf16 v[{d}:{d+3}], v[{WF+4*T}:{WF+4*T+3}], v[{xb+4*M}:{xb+4*M+3}], {c}')
    a(f'''
    {name}_skiplast:
    s_waitcnt lgkmcnt(0)
    s_nop 7
    s_nop 7
    s_barrier
    v_lshlrev_b32 v12, 4, v1
    ''')
    for dM in range(1, 4):
        a(f'''
        s_add_u32 s42, s30, {dM}
        s_and_b32 s42, s42, 3
        s_mul_i32 s43, s42, 30720
        s_add_u32 s43, s43, {(dM-1)*10240}
        v_add_u32 v13, s43, v12
        ''')
        for M in range(4):
            a(f'''
            s_cmp_lg_u32 s42, {M}
            s_cbranch_scc1 {name}_w{dM}_{M}
            ''')
            for part in range(2):
                for T in range(5):
                    d = ACC[part] + (T * 4 + M) * 4
                    a(f'ds_write_b128 v13, v[{d}:{d+3}] offset:{(part*5+T)*1024}')
            a.label(f'{name}_w{dM}_{M}')
    a(f'''
    s_waitcnt lgkmcnt(0)
    s_barrier
    s_mul_i32 s43, s30, 30720
    v_add_u32 v13, s43, v12
    ''')
    for M in range(4):
        a(f'''
        s_cmp_lg_u32 s30, {M}
        s_cbranch_scc1 {name}_o{M}
        ''')
        for part in range(2):
            for T in range(5):
                d = ACC[part] + (T * 4 + M) * 4
                for r in range(4):
                    a(f'v_mov_b32 v{16 + part*20 + T*4 + r}, v{d+r}')
        a.label(f'{name}_o{M}')
    for src in range(3):
        for pt in range(10):
            a(f'ds_read_b128 v[{64+ (src*10+pt)*4}:{64+(src*10+pt)*4+3}], v13 offset:{src*10240 + pt*1024}')
    a(f'''
    s_lshl_b32 s42, s30, 4
    s_add_u32 s42, s42, s33
    v_and_b32 v12, 15, v1
    v_add_u32 v12, s42, v12
    v_lshlrev_b32 v14, 2, v12
    v_add_u32 v14, {WS_GATE}, v14
    buffer_load_dword v15, v14, s[24:27], 0 offen
    s_waitcnt lgkmcnt(0)
    ''')
    for src in range(3):
        for k in range(40):
            a(f'v_add_f32 v{16+k}, v{16+k}, v{64+src*40+k}')
    a(f'''
    v_mul_u32_u24 v12, 1280, v12
    v_lshrrev_b32 v13, 4, v1
    v_lshlrev_b32 v13, 3, v13
    v_add_u32 v12, v12, v13
    s_mov_b32 s45, 0xffff0000
    s_waitcnt vmcnt(0)
    v_sub_f32 v14, 1.0, v15
    v_cvt_pk_bf16_f32 v14, v14, v14
    v_lshlrev_b32 v14, 16, v14
    ''')
    for T in range(5):
        for p in range(2):
            ra = 16 + T*4 + 2*p
            rb = 36 + T*4 + 2*p
            a(f'''
            v_cvt_pk_bf16_f32 v56, v{ra}, v{ra+1}
            v_cvt_pk_bf16_f32 v57, v{rb}, v{rb+1}
            v_lshlrev_b32 v58, 16, v56
            v_and_b32 v59, s45, v56
            v_lshlrev_b32 v60, 16, v57
            v_and_b32 v61, s45, v57
            v_mul_f32 v58, v15, v58
            v_mul_f32 v59, v15, v59
            v_mul_f32 v60, v14, v60
            v_mul_f32 v61, v14, v61
            v_cvt_pk_bf16_f32 v56, v58, v59
            v_cvt_pk_bf16_f32 v57, v60, v61
            v_lshlrev_b32 v58, 16, v56
            v_and_b32 v59, s45, v56
            v_lshlrev_b32 v60, 16, v57
            v_and_b32 v61, s45, v57
            v_add_f32 v58, v58, v60
            v_add_f32 v59, v59, v61
            v_cvt_pk_bf16_f32 v{62+p}, v58, v59
            ''')
        a(f'''
        buffer_store_dwordx2 v[62:63], v12, s[36:39], s31 offen offset:{32*T}
        s_nop 1
        ''')
    a.label(f'{name}_end')
    a('s_endpgm')
    return a.text() + kernel_desc(name, 244, 64)

if __name__ == '__main__':
    print(gen_k3())
```
